```python
import torch

def _softmax(x, axis=-1):
    return torch.softmax(x, dim=axis)

def _gelu(x):
    return torch.nn.functional.gelu(x, approximate='tanh')

def _silu(x):
    return torch.nn.functional.silu(x)

def _sigmoid(x):
    return torch.sigmoid(x)

def _layernorm(x, axis=-1, eps=1e-05):
    m = x.mean(dim=axis, keepdim=True)
    v = x.var(dim=axis, keepdim=True, unbiased=False)
    return (x - m) / torch.sqrt(v + eps)

def _scatter_add(tgt, idx, src, axis=0):
    return tgt.clone().index_add_(axis, idx, src)

def _segment_sum(src, seg, n):
    out = torch.zeros((n,) + src.shape[1:], dtype=src.dtype)
    return out.index_add_(0, seg, src)

def _pad(x, pw):
    flat = tuple((v for pair in reversed(pw) for v in pair))
    return torch.nn.functional.pad(x, flat)
kernel_name = 'adaLN_cond__gqa_block_cached__glu_gated_swiglu__prompt'

def setup_inputs():

    _w = lambda a: (lambda t: t.to(torch.bfloat16) if t.is_floating_point() else t)(torch.as_tensor(a))

    def _A_setup():
        B, Sq, D = (1, 2048, 576)
        Hq, Hkv, Sk, Dh = (32, 16, 2048, 128)
        assert Hq % Hkv == 0, (Hq, Hkv)
        return {'x': _w((lambda *s: torch.randn(*s, dtype=torch.bfloat16) * 0.05)(B, Sq, D)), 'k_cache': _w((lambda *s: torch.randn(*s, dtype=torch.bfloat16) * 3.2)(B, Hkv, Sk, Dh)), 'v_cache': _w((lambda *s: torch.randn(*s, dtype=torch.bfloat16) * 1.6)(B, Hkv, Sk, Dh)), 'wq': _w((lambda *s: torch.randn(*s, dtype=torch.bfloat16) * 3.2)(D, Hq * Dh) * D ** (-0.5)), 'wo': _w((lambda *s: torch.randn(*s, dtype=torch.bfloat16) * 1.6)(Hq * Dh, D) * (Hq * Dh) ** (-0.5))}
    _A_in = _A_setup()

    def _B_setup():
        B, S, D, F = (1, 2048, 576, 4608)
        return {'x': _w((lambda *s: torch.randn(*s, dtype=torch.bfloat16) * 0.05)(B, S, D)), 'w1': _w((lambda *s: torch.randn(*s, dtype=torch.bfloat16) * 0.8)(D, F) * (2.0 / D) ** 0.5), 'w3': _w((lambda *s: torch.randn(*s, dtype=torch.bfloat16) * 0.8)(D, F) * (2.0 / D) ** 0.5), 'w2': _w((lambda *s: torch.randn(*s, dtype=torch.bfloat16) * 0.8)(F, D) * (2.0 / F) ** 0.5)}
    _B_in = _B_setup()
    return {'A_x': _A_in['x'], 'A_k_cache': _A_in['k_cache'], 'A_v_cache': _A_in['v_cache'], 'A_wq': _A_in['wq'], 'A_wo': _A_in['wo'], 'B_x': _B_in['x'], 'B_w1': _B_in['w1'], 'B_w3': _B_in['w3'], 'B_w2': _B_in['w2'], 'c': _w((lambda *s: torch.randn(*s, dtype=torch.bfloat16) * 0.2)(1, 576) * 8.0), 'w_mod': _w((lambda *s: torch.randn(*s, dtype=torch.bfloat16) * 0.2)(576, 6 * 576) * 576 ** (-0.5) * 8.0)}

def reference(A_x, A_k_cache, A_v_cache, A_wq, A_wo, B_x, B_w1, B_w3, B_w2, c, w_mod):

    def _A_ref(x, k_cache, v_cache, wq, wo):
        B, Sq, D = x.shape
        Hq, Dh = (32, 128)
        Hkv = k_cache.shape[1]
        rep = Hq // Hkv
        q = (lambda x, *d: x.permute(*d))((x @ wq).reshape(B, Sq, Hq, Dh), 0, 2, 1, 3)
        k = (lambda x, n, axis: torch.repeat_interleave(x, n, dim=axis))(k_cache, rep, axis=1)
        v = (lambda x, n, axis: torch.repeat_interleave(x, n, dim=axis))(v_cache, rep, axis=1)
        scores = torch.einsum('bhqd,bhkd->bhqk', q, k) * Dh ** (-0.5)
        p = _softmax(scores, axis=-1)
        o = torch.einsum('bhqk,bhkd->bhqd', p, v)
        return (lambda x, *d: x.permute(*d))(o, 0, 2, 1, 3).reshape(B, Sq, Hq * Dh) @ wo

    def _B_ref(x, w1, w3, w2):
        gate = torch.einsum('bsd,df->bsf', x, w1)
        up = torch.einsum('bsd,df->bsf', x, w3)
        h = _silu(gate) * up
        out = torch.einsum('bsf,fd->bsd', h, w2)
        return out
    x = A_x
    mod = (_silu(c) @ w_mod).reshape(c.shape[0], 6, 1, -1)
    sa, ca, ga, sb, cb, gb = (mod[:, 0].clone(), mod[:, 1].clone(), mod[:, 2].clone(), mod[:, 3].clone(), mod[:, 4].clone(), mod[:, 5].clone())
    h = _layernorm(x, axis=-1) * (1 + ca) + sa
    x = x + ga * _A_ref(h, A_k_cache, A_v_cache, A_wq, A_wo)
    h = _layernorm(x, axis=-1) * (1 + cb) + sb
    x = x + gb * _B_ref(h, B_w1, B_w3, B_w2)
    return x
```

```python
TRANS = ("v_exp_f32", "v_log_f32", "v_rcp_f32", "v_rsq_f32", "v_sqrt_f32", "v_sin_f32", "v_cos_f32")


class R:
    __slots__ = ("k", "i", "n", "neg", "ab")

    def __init__(self, k, i, n=1, neg=False, ab=False):
        self.k, self.i, self.n, self.neg, self.ab = k, i, n, neg, ab

    def __str__(self):
        t = f"{self.k}{self.i}" if self.n == 1 else f"{self.k}[{self.i}:{self.i + self.n - 1}]"
        if self.ab:
            t = f"abs({t})"
        return ("-" if self.neg else "") + t

    def regs(self):
        return [(self.k, self.i + j) for j in range(self.n)]

    def __getitem__(self, j):
        if isinstance(j, slice):
            a = j.start or 0
            b = self.n if j.stop is None else j.stop
            return R(self.k, self.i + a, b - a)
        assert 0 <= j < self.n, (self, j)
        return R(self.k, self.i + j, 1)

    def __neg__(self):
        return R(self.k, self.i, self.n, not self.neg, self.ab)


def v(i, n=1): return R("v", i, n)
def a(i, n=1): return R("a", i, n)
def s(i, n=1): return R("s", i, n)


class Special:
    def __init__(self, name, regs): self.name, self._r = name, regs
    def __str__(self): return self.name
    def regs(self): return self._r


VCC = Special("vcc", [("s", 106), ("s", 107)])
EXEC = Special("exec", [("s", 126), ("s", 127)])
M0 = Special("m0", [("s", 124)])
SCC = ("scc", 0)


def regs_of(x):
    return x.regs() if isinstance(x, (R, Special)) else []


def fmt(x):
    if isinstance(x, float):
        import struct
        inl = {0.0: "0", 0.5: "0.5", -0.5: "-0.5", 1.0: "1.0", -1.0: "-1.0", 2.0: "2.0", -2.0: "-2.0", 4.0: "4.0", -4.0: "-4.0"}
        if x in inl:
            return inl[x]
        return hex(struct.unpack("<I", struct.pack("<f", x))[0])
    if isinstance(x, int) and not (-16 <= x <= 64):
        return hex(x & 0xFFFFFFFF)
    return str(x)


class I:
    __slots__ = ("text", "rd", "wr", "cls", "passes", "srcc", "srcab", "tag", "req", "auto", "states", "grp", "wide")

    def __init__(self, text, rd=(), wr=(), cls="valu", **kw):
        self.text, self.rd, self.wr, self.cls = text, list(rd), list(wr), cls
        self.passes = kw.get("passes", 0)
        self.srcc = kw.get("srcc", [])
        self.srcab = kw.get("srcab", [])
        self.tag = kw.get("tag")
        self.grp = kw.get("grp")
        self.wide = kw.get("wide", [])
        self.req = None
        self.auto = None
        self.states = kw.get("states", 1)


class Loop:
    def __init__(self, body, count): self.body, self.count = body, count


def valu(op, dst, *src, mods=""):
    rd = [r for x in src for r in regs_of(x)]
    wr = regs_of(dst)
    if op in ("v_fmac_f32", "v_fmac_f32_e32") or op.startswith("v_pk_fmac"):
        rd += wr
    if op.startswith("v_cndmask") and len(src) == 2:
        rd += VCC.regs()
        text = f"{op} {dst}, {fmt(src[0])}, {fmt(src[1])}, vcc"
    else:
        text = f"{op} {dst}, " + ", ".join(fmt(x) for x in src)
    cls = "trans" if op in TRANS else "valu"
    if op.startswith("v_permlane"):
        rd += wr
        wr = wr + regs_of(src[0])
        cls = "perm"
    if op.startswith("v_readfirstlane") or op.startswith("v_readlane"):
        cls = "rdlane"
    if "dpp" in mods or "quad_perm" in mods or "row_" in mods:
        cls = "dpp"
    return I(text + (" " + mods if mods else ""), rd, wr, cls)


def salu(op, dst, *src):
    rd = [r for x in src for r in regs_of(x)]
    if op.startswith("s_cmp"):
        return I(f"{op} {fmt(dst)}, {fmt(src[0])}", regs_of(dst) + rd, [SCC], "salu")
    wr = regs_of(dst) + [SCC]
    if op in ("s_cselect_b32", "s_cselect_b64", "s_addc_u32"):
        rd.append(SCC)
    if "saveexec" in op:
        wr += EXEC.regs()
    return I(f"{op} {dst}, " + ", ".join(fmt(x) for x in src), rd, wr, "salu")


def mfma16(d, A, B, C):
    return I(f"v_mfma_f32_16x16x32_bf16 {d}, {A}, {B}, {fmt(C)}", regs_of(A) + regs_of(B) + regs_of(C), regs_of(d),
             "mfma", passes=4, srcc=regs_of(C), srcab=regs_of(A) + regs_of(B))


def mfma32(d, A, B, C):
    return I(f"v_mfma_f32_32x32x16_bf16 {d}, {A}, {B}, {fmt(C)}", regs_of(A) + regs_of(B) + regs_of(C), regs_of(d),
             "mfma", passes=8, srcc=regs_of(C), srcab=regs_of(A) + regs_of(B))


def _off(o):
    return f" offset:{o}" if o else ""


def ds_read(op, dst, addr, off=0):
    assert 0 <= off < 65536, off
    return I(f"{op} {dst}, {addr}{_off(off)}", regs_of(addr), regs_of(dst), "dsr")


def ds_write(op, addr, data, off=0):
    assert 0 <= off < 65536, off
    return I(f"{op} {addr}, {data}{_off(off)}", regs_of(addr) + regs_of(data), [], "dsw")


_LD = {1: "dword", 2: "dwordx2", 3: "dwordx3", 4: "dwordx4"}


def bload(dst, voff, srd, soff=0, off=0, op=None, mods=""):
    assert 0 <= off < 4096, off
    op = op or f"buffer_load_{_LD[dst.n]}"
    return I(f"{op} {dst}, {voff}, {srd}, {fmt(soff)} offen{_off(off)}{' ' + mods if mods else ''}",
             regs_of(voff) + regs_of(srd) + regs_of(soff), regs_of(dst), "vld")


def dma(voff, srd, soff=0, off=0, tag=None, first=False, mods=""):
    assert 0 <= off < 4096, off
    return I(f"buffer_load_dwordx4 {voff}, {srd}, {fmt(soff)} offen{_off(off)} lds{' ' + mods if mods else ''}",
             regs_of(voff) + regs_of(srd) + regs_of(soff) + M0.regs(), [], "dma", tag=tag, grp=first)


def bstore(data, voff, srd, soff=0, off=0, op=None, mods=""):
    assert 0 <= off < 4096, off
    op = op or f"buffer_store_{_LD[data.n]}"
    return I(f"{op} {data}, {voff}, {srd}, {fmt(soff)} offen{_off(off)}{' ' + mods if mods else ''}",
             regs_of(data) + regs_of(voff) + regs_of(srd) + regs_of(soff), [], "vst",
             wide=regs_of(data) if data.n >= 3 else [])


def sload(dst, base, off):
    n = {1: "dword", 2: "dwordx2", 4: "dwordx4", 8: "dwordx8", 16: "dwordx16"}[dst.n]
    return I(f"s_load_{n} {dst}, {base}, {off}", regs_of(base), regs_of(dst), "smem")


def raw(text, cls="misc", rd=(), wr=(), states=1):
    return I(text, rd, wr, cls, states=states)


def nop(n=0): return I(f"s_nop {n}", cls="misc", states=n + 1)
def barrier(): return I("s_barrier", cls="barrier")
def label(name): return I(f"{name}:", cls="label", states=0)
def branch(op, target): return I(f"{op} {target}", cls="branch")
def waitcnt(vm=None, lgkm=None):
    t = "s_waitcnt" + (f" vmcnt({vm})" if vm is not None else "") + (f" lgkmcnt({lgkm})" if lgkm is not None else "")
    ins = I(t, cls="wait")
    ins.req = {"vm": vm, "lgkm": lgkm, "fixed": True}
    return ins


def wait_ph(kinds=("lgkm", "vm")):
    ins = I("s_waitcnt", cls="wait")
    ins.req = {"vm": None, "lgkm": None, "fixed": False, "kinds": kinds}
    return ins


def wait_dma(tag, age, lgkm=None):
    ins = I("s_waitcnt", cls="wait", tag=(tag, age))
    ins.req = {"vm": None, "lgkm": lgkm, "fixed": False, "kinds": ("lgkm", "vm")}
    return ins


def flatten(prog, dynamic):
    out = []
    for x in prog:
        if isinstance(x, Loop):
            for _ in range(x.count if dynamic else 1):
                out += flatten(x.body, dynamic)
        elif isinstance(x, list):
            out += flatten(x, dynamic)
        else:
            out.append(x)
    return out


def _cnt_class(ins):
    if ins.cls in ("dsr", "dsw"):
        return "lgkm"
    if ins.cls in ("vld", "vst", "dma"):
        return "vm"
    return None


def resolve_waits(prog, name=""):
    tr = flatten(prog, True)
    issued = {"lgkm": 0, "vm": 0}
    pend = {}
    last_ph = {"lgkm": None, "vm": None}
    done = {"lgkm": 0, "vm": 0}
    groups = {}
    MAXC = {"lgkm": 15, "vm": 63}
    smem_pend = set()

    def need(c, seq, ins):
        if seq <= done[c]:
            return
        ph = last_ph[c]
        if ph is not None and ph[1] >= seq:
            n = min(ph[1] - seq, MAXC[c])
            w = ph[0]
            w.req[c] = n if w.req[c] is None else min(w.req[c], n)
        else:
            n = min(issued[c] - seq, MAXC[c])
            ins.auto = ins.auto or {}
            ins.auto[c] = min(ins.auto.get(c, 99), n)
        done[c] = seq

    for ins in tr:
        if ins.cls == "wait":
            rq = ins.req
            if rq.get("fixed"):
                for c in ("lgkm", "vm"):
                    if rq[c] is not None:
                        done[c] = max(done[c], issued[c] - rq[c])
                if rq["lgkm"] == 0:
                    smem_pend.clear()
            else:
                if ins.tag is not None:
                    tag, age = ins.tag
                    g = groups.get(tag, [])
                    if len(g) > age:
                        seq = g[len(g) - 1 - age]
                        n = min(issued["vm"] - seq, 63)
                        rq["vm"] = n if rq["vm"] is None else min(rq["vm"], n)
                        done["vm"] = max(done["vm"], seq)
                    if rq["lgkm"] is not None:
                        done["lgkm"] = max(done["lgkm"], issued["lgkm"] - rq["lgkm"])
                for c in rq["kinds"]:
                    last_ph[c] = (ins, issued[c])
            continue
        for r in ins.rd + ins.wr:
            if r in pend:
                c, seq = pend.pop(r)
                need(c, seq, ins)
            assert r not in smem_pend, f"{name}: use of s_load result before lgkmcnt(0): {ins.text}"
        c = _cnt_class(ins)
        if c:
            issued[c] += 1
            if ins.cls in ("dsr", "vld"):
                for r in ins.wr:
                    pend[r] = (c, issued[c])
            if ins.cls == "dma" and ins.tag is not None:
                g = groups.setdefault(ins.tag, [])
                if ins.grp or not g:
                    g.append(issued[c])
                else:
                    g[-1] = issued[c]
        if ins.cls == "smem":
            smem_pend.update(ins.wr)


def _need_states(p, c):
    n = 0
    pw, crd, cwr = set(p.wr), set(c.rd), set(c.wr)
    isv = ("valu", "trans", "perm", "rdlane", "dpp")
    if p.cls in isv:
        vw = {r for r in pw if r[0] in "va"}
        sw = {r for r in pw if r[0] == "s"}
        if c.cls == "mfma" and vw & crd:
            n = max(n, 2)
        if c.cls in ("perm", "dpp") and vw & crd:
            n = max(n, 2)
        if c.cls == "rdlane" and vw & crd:
            n = max(n, 1)
        if p.cls == "trans" and c.cls != "trans" and vw & crd:
            n = max(n, 1)
        if sw & crd:
            if c.cls in ("vld", "vst", "dma"):
                n = max(n, 5)
            elif c.cls == "rdlane":
                n = max(n, 4)
            elif c.cls in isv or c.cls == "mfma":
                n = max(n, 2)
            elif c.cls in ("salu", "branch"):
                n = max(n, 1)
    if p.cls == "mfma":
        big = p.passes == 8
        if c.cls == "mfma":
            if pw & set(c.srcab):
                n = max(n, 12 if big else 8)
            if pw & set(c.srcc) and not (c.srcc == p.wr and c.passes == p.passes):
                n = max(n, 10 if big else 6)
            if pw & cwr and not (c.srcc == p.wr and c.passes == p.passes):
                n = max(n, 10 if big else 6)
        elif pw & (crd | cwr):
            n = max(n, 12 if big else 8)
        if c.cls in isv and set(p.srcc) & cwr:
            n = max(n, 7 if big else 3)
    if p.cls == "salu" and ("s", 124) in pw and c.cls == "dma":
        n = max(n, 1)
    if p.cls == "vst" and p.wide and set(p.wide) & cwr:
        n = max(n, 2)
    return n


def render(prog, name="", report=True):
    lines, stats = [], {"nops": 0, "autow": 0}

    def expand(seq):
        out = []
        for ins in seq:
            if ins.auto:
                out.append(waitcnt(ins.auto.get("vm"), ins.auto.get("lgkm")))
                stats["autow"] += 1
            if ins.cls == "wait" and not ins.req.get("fixed"):
                if ins.req["vm"] is None and ins.req["lgkm"] is None:
                    out.append(nop(0))
                else:
                    out.append(waitcnt(ins.req["vm"], ins.req["lgkm"]))
            else:
                out.append(ins)
        return out

    def pad(seq, hist):
        out = []
        for ins in seq:
            dist, need = 0, 0
            for p in reversed(hist[-24:]):
                need = max(need, _need_states(p, ins) - dist)
                dist += p.states
                if dist >= 20:
                    break
            if need > 0 and ins.cls != "label":
                z = nop(need - 1)
                out.append(z)
                hist.append(z)
                stats["nops"] += 1
            out.append(ins)
            hist.append(ins)
        return out

    def walk(p, hist):
        for x in p:
            if isinstance(x, Loop):
                body = expand(flatten(x.body, False))
                first = pad(body, hist)
                again = pad(first, list(hist))
                if len(again) != len(first):
                    stats["nops"] -= len(again) - len(first)
                    first = again
                    hist += first[-24:]
                lines.extend(first)
            elif isinstance(x, list):
                walk(x, hist)
            else:
                lines.extend(pad(expand([x]), hist))

    walk(prog, [])
    if report:
        print(f"[{name}] instrs={len(lines)} hazard_nops={stats['nops']} auto_waits={stats['autow']}")
    return [("" if i.cls == "label" else "  ") + i.text for i in lines]


def kernel_text(name, prog, extra_blocks, vgprs, agprs, sgprs=102):
    resolve_waits(prog, name)
    out = [".text", f".globl {name}", ".p2align 8", f".type {name},@function", f"{name}:"]
    out += render(prog, name)
    for blk in extra_blocks:
        resolve_waits(blk, name + ".x")
        out += render(blk, name + ".x", report=False)
    acc = (vgprs + 3) // 4 * 4
    nfv = acc + agprs if agprs else vgprs
    out += ['.section .rodata,"a"', ".p2align 6", f".amdhsa_kernel {name}",
            f"  .amdhsa_next_free_vgpr {nfv}", f"  .amdhsa_next_free_sgpr {sgprs}", f"  .amdhsa_accum_offset {acc}",
            "  .amdhsa_group_segment_fixed_size 0", "  .amdhsa_kernarg_size 112", "  .amdhsa_user_sgpr_count 2",
            "  .amdhsa_user_sgpr_kernarg_segment_ptr 1", "  .amdhsa_system_sgpr_workgroup_id_x 1",
            ".end_amdhsa_kernel"]
    return "\n".join(out) + "\n"


def make_srd(dst, base, off, size):
    out = []
    if off:
        out.append(salu("s_add_u32", dst[0], base[0], off))
        out.append(salu("s_addc_u32", dst[1], base[1], 0))
    else:
        out.append(salu("s_mov_b32", dst[0], base[0]))
        out.append(salu("s_mov_b32", dst[1], base[1]))
    out.append(salu("s_mov_b32", dst[2], size))
    out.append(salu("s_mov_b32", dst[3], 0x20000))
    return out


def weave(mf, fill):
    out = []
    for i, m in enumerate(mf):
        out.append(m)
        out += fill.get(i, [])
    return out


WS_STAMP = 0x8000000
ST_SRD = s(92, 4)


def stamp_setup(ws_pair, kidx, vtmp):
    o = make_srd(ST_SRD, ws_pair, WS_STAMP + kidx * 0x40000, 0x40000)
    o += [valu("v_lshrrev_b32", vtmp, 6, v(0)), valu("v_lshlrev_b32", vtmp, 7, vtmp),
          salu("s_lshl_b32", s(90), s(2), 10), valu("v_add_u32", vtmp, s(90), vtmp), nop(0),
          valu("v_readfirstlane_b32", s(91), vtmp)]
    return o


def stamp(idx, t2):
    return [waitcnt(lgkm=0), raw("s_memtime s[96:97]", "smem"), raw("s_memrealtime s[98:99]", "smem"), waitcnt(lgkm=0),
            valu("v_mov_b32", t2[0], s(96)), valu("v_mov_b32", t2[1], s(98)),
            raw(f"buffer_store_dwordx2 {t2}, off, {ST_SRD}, s91 offset:{idx * 8}", "vst", rd=t2.regs())]
```

```python
from asmlib import *
from layout import *

NS = 4
SLOT = 8192
LDS = 4 * NS * SLOT
NWG = 240

sA, sW, sX, sM, sY, sS, sX1 = s(8, 4), s(12, 4), s(16, 4), s(20, 4), s(24, 4), s(28, 4), s(32, 4)
sWB, sAO, sWO, sCNT, sWV, sCB, sTB, sT, sT2 = s(36), s(37), s(38), s(39), s(40), s(41), s(42), s(43), s(49)


def ACC(nb, qb): return v(8 + (qb * 4 + nb) * 4, 4)
def WF(ks2, nb): return v(88 + (ks2 * 4 + nb) * 4, 4)
def BF(c, ks2, qb): return a(((c % NS) * 10 + ks2 * 5 + qb) * 4, 4)
def DW(i): return v(120 + i)
def AV(qb): return v(128 + qb)
def RA(nb): return v(133 + nb)
XO, YO, MO, RO, X1O, SO = v(137), v(138), v(139), v(140), v(141), v(142)
def XR(b): return v(144 + b * 4, 4)
def GA(h): return v(168 + h * 4, 4)
def GB(h): return v(176 + h * 4, 4)
def RED(i): return v(184 + i * 4, 4)
T = [v(1), v(2), v(3), v(4), v(5), v(6), v(7), v(232), v(233), v(234), v(235)]


def chunk_loads(c):
    out = []
    for i in range(8):
        if i % 4 == 0:
            out.append(salu("s_add_u32", M0, sWB, (c % NS) * SLOT + i * 1024))
        out.append(dma(DW(i), sW, sWO, (i % 4) * 1024, tag="w", first=(i == 0)))
    out.append(salu("s_add_u32", sWO, sWO, 256 * 1152))
    out += [bload(BF(c, ks2, qb), AV(qb), sA, sAO, ks2 * 1024) for ks2 in range(2) for qb in range(5)]
    out.append(salu("s_add_u32", sAO, sAO, 8192))
    return out


def chunk(c, first, issue):
    o = [wait_dma("w", 2 if issue == "steady" else issue)]
    reads = [ds_read("ds_read_b64_tr_b16", WF(ks2, nb)[2 * h:2 * h + 2], RA(nb),
                     (c % NS) * SLOT + ks2 * 4096 + h * 2048)
             for ks2 in range(2) for nb in range(4) for h in range(2)]
    o += reads[:4]
    loads = chunk_loads(c + NS - 1) if issue == "steady" else []
    mf = [mfma16(ACC(nb, qb), WF(ks2, nb), BF(c, ks2, qb), 0 if (first and ks2 == 0) else ACC(nb, qb))
          for ks2 in range(2) for nb in range(4) for qb in range(5)]
    fill = {}
    rest = reads[4:]
    for g in range(40):
        f = []
        if g % 2 == 0 and rest:
            f.append(rest.pop(0))
        elif loads:
            f.append(loads.pop(0))
            if loads and loads[0].cls == "salu":
                f.append(loads.pop(0))
        if g % 5 == 4:
            f.append(wait_ph(("lgkm",)))
        fill[g] = f
    o.append(wait_ph(("lgkm",)))
    o += weave(mf, fill)
    o += loads
    return o


def build_one(name, kidx, K, a_off, a_ts, w_arg, final, cfg):
    NC = K // 256
    ST = (lambda i: stamp(i, v(236, 2))) if cfg.get("stamp") else (lambda i: [])
    end = f"{name}_end"
    o = [salu("s_cmp_ge_u32", s(2), NWG), branch("s_cbranch_scc1", end),
         salu("s_and_b32", sT, s(2), 7), salu("s_lshr_b32", sT2, s(2), 3),
         salu("s_cmp_lt_u32", sT, 2), salu("s_cselect_b32", sCB, 30, 29),
         salu("s_cmp_ge_u32", sT2, sCB), branch("s_cbranch_scc1", end),
         salu("s_min_u32", sCB, sT, 2), salu("s_mul_i32", sT, sT, 29), salu("s_add_u32", sT, sT, sCB), salu("s_add_u32", sT, sT, sT2),
         salu("s_mul_i32", sTB, sT, 7282), salu("s_lshr_b32", sTB, sTB, 16),
         salu("s_mul_i32", sT2, sTB, 9), salu("s_sub_u32", sCB, sT, sT2), salu("s_mul_i32", sTB, sTB, 5)]
    o += [sload(s(4, 2), s(0, 2), ARG["ws"]), sload(s(6, 2), s(0, 2), ARG[w_arg]),
          sload(s(44, 2), s(0, 2), ARG["out" if final else "x"])]
    lane, w, t0, t1, t2, t3 = T[0], T[1], T[2], T[3], T[4], T[5]
    o += [valu("v_and_b32", lane, 63, v(0)), valu("v_lshrrev_b32", w, 6, v(0)), nop(0), valu("v_readfirstlane_b32", sWV, w)]
    o += [salu("s_mul_i32", sWB, sWV, NS * SLOT),
          salu("s_mul_i32", sWO, sWV, 64 * 1152), salu("s_lshl_b32", sT, sCB, 7), salu("s_add_u32", sWO, sWO, sT),
          salu("s_lshl_b32", sAO, sWV, 11)]
    o += [valu("v_lshrrev_b32", t0, 3, lane), valu("v_mul_u32_u24", t0, 1152, t0),
          valu("v_lshrrev_b32", t1, 4, lane), valu("v_lshlrev_b32", t1, 1, t1), valu("v_and_b32", t2, 7, lane),
          valu("v_xor_b32", t1, t1, t2), valu("v_lshl_add_u32", DW(0), t1, 4, t0)]
    for i in range(1, 8):
        o.append(valu("v_add_u32", DW(i), i * 9216 - (i % 4) * 1024, DW(0)))
    o += [salu("s_mul_i32", sT, sTB, a_ts), valu("v_lshlrev_b32", RO, 4, lane), valu("v_add_u32", AV(0), sT, RO)]
    for qb in range(1, 5):
        o.append(valu("v_add_u32", AV(qb), qb * a_ts, AV(0)))
    o += [waitcnt(lgkm=0)]
    o += make_srd(sA, s(4, 2), a_off, 128 * a_ts)
    o += make_srd(sW, s(6, 2), 0, K * 1152)
    if cfg.get("stamp"):
        o += stamp_setup(s(4, 2), kidx, v(236))
    o += ST(0)
    for c in range(NS - 1):
        o += chunk_loads(c)
    o += [valu("v_lshrrev_b32", t0, 2, lane), valu("v_lshlrev_b32", t0, 7, t0), valu("v_and_b32", t1, 3, lane),
          valu("v_lshl_add_u32", t0, t1, 3, t0), valu("v_add_u32", t0, sWB, t0),
          valu("v_bfe_u32", t1, lane, 3, 2)]
    for nb in range(4):
        o += [valu("v_xor_b32", t2, nb, t1), valu("v_lshl_add_u32", RA(nb), t2, 5, t0)]
    o += make_srd(sX, s(44, 2), 0, 2048 * 1152)
    o += make_srd(sM, s(4, 2), WS_MOD, 3456 * 4)
    o += make_srd(sX1, s(4, 2), WS_X1, SZ_X1)
    sP, sQ0 = s(50), s(51)
    i16, g = T[6], T[7]
    o += [salu("s_and_b32", sP, sWV, 1), salu("s_lshr_b32", sQ0, sWV, 1), salu("s_mul_i32", sQ0, sQ0, 3),
          salu("s_add_u32", sTB, sTB, sQ0),
          valu("v_and_b32", i16, 15, lane), valu("v_lshrrev_b32", g, 4, lane),
          salu("s_lshl_b32", sT, sTB, 4), valu("v_add_u32", t1, sT, i16),
          valu("v_mul_u32_u24", XO, 1152, t1), valu("v_lshl_add_u32", XO, g, 3, XO),
          salu("s_lshl_b32", sT, sCB, 1), salu("s_add_u32", sT, sT, sP),
          salu("s_lshl_b32", sT2, sT, 6), valu("v_add_u32", XO, sT2, XO),
          salu("s_lshl_b32", sT2, sT, 7), valu("v_lshl_add_u32", MO, g, 4, sT2),
          valu("v_mul_u32_u24", SO, 144, t1), salu("s_lshl_b32", sT2, sT, 3), valu("v_add_u32", SO, sT2, SO),
          salu("s_lshl_b32", sT2, sT, 10), salu("s_mul_i32", sT, sTB, TS_H), salu("s_add_u32", sT, sT, sT2),
          valu("v_add_u32", YO, sT, RO),
          salu("s_lshl_b32", sT, s(2), 2), salu("s_add_u32", sT, sT, sWV), salu("s_mul_i32", sT, sT, 6144),
          valu("v_add_u32", X1O, sT, RO)]
    o += [salu("s_mov_b32", s(46), 4096), salu("s_mov_b32", s(47), (5 if final else 2) * 2304), salu("s_mov_b32", s(48), 4 * 2304)]
    for b in range(3):
        o += [salu("s_mov_b32", s(52 + b), b * 16 * 1152), salu("s_mov_b32", s(55 + b), b * TS_H), salu("s_mov_b32", s(58 + b), b * 16 * 144)]
    ep_loads = []
    for h in range(2):
        ep_loads.append(bload(GA(h), MO, sM, s(47), h * 64))
        if not final:
            ep_loads.append(bload(GB(h), MO, sM, s(48), h * 64))
    for b in range(3):
        for h in range(2):
            n = b * 2 + h
            if final:
                ep_loads.append(bload(XR(n), X1O, sX1, 0 if n < 4 else s(46), (n % 4) * 1024))
            else:
                ep_loads.append(bload(XR(n)[0:2], XO, sX, s(52 + b), h * 32))
    if not final:
        o += make_srd(sY, s(4, 2), WS_Y, SZ_H)
        o += make_srd(sS, s(4, 2), WS_STAT, SZ_STAT)
    o += ST(1)
    steady = NC - (NS - 1)
    o += chunk(0, True, "steady")
    nloop = (steady - 1) // NS
    o.append(salu("s_mov_b32", sCNT, nloop))
    lp = [label(f"{name}_loop")]
    for c in range(1, 1 + NS):
        lp += chunk(c, False, "steady")
    lp += [salu("s_sub_u32", sCNT, sCNT, 1), salu("s_cmp_lg_u32", sCNT, 0), branch("s_cbranch_scc1", f"{name}_loop")]
    o.append(Loop(lp, nloop))
    for c in range(1 + nloop * NS, NC):
        if c == steady:
            o += ep_loads
        o += chunk(c, False, "steady" if c < steady else NC - 1 - c)
    o += ST(2)
    o += [waitcnt(lgkm=0), barrier(), nop(7)]
    o += [salu("s_lshl_b32", sT, sWV, 10), valu("v_add_u32", t1, sT, RO), valu("v_add_u32", t2, 49152, t1)]
    for qb in range(5):
        for nb in range(4):
            o.append(ds_write("ds_write_b128", t1 if qb < 3 else t2, ACC(nb, qb), (qb % 3) * 16384 + nb * 4096))
    o += [salu("s_lshl_b32", sT, sQ0, 14), salu("s_lshl_b32", sT2, sP, 13), salu("s_add_u32", sT, sT, sT2),
          valu("v_add_u32", t1, sT, RO), waitcnt(lgkm=0), barrier()]

    def PR(n, src): return v(8 + (n * 4 + src) * 4, 4)
    for b in range(3):
        for h in range(2):
            for src in range(4):
                o.append(ds_read("ds_read_b128", PR(b * 2 + h, src), t1, b * 16384 + h * 4096 + src * 1024))
    sm, sq = T[8], T[9]
    for b in range(3):
        if b == 2:
            o += [salu("s_cmp_ge_u32", sWV, 2), branch("s_cbranch_scc1", end + "2")]
        for h in range(2):
            n = b * 2 + h
            for x, y in ((0, 1), (2, 3), (0, 2)):
                for k in range(2):
                    o.append(valu("v_pk_add_f32", PR(n, x)[2 * k:2 * k + 2], PR(n, x)[2 * k:2 * k + 2], PR(n, y)[2 * k:2 * k + 2]))
        pk = RED(b)
        if final:
            for h in range(2):
                n = b * 2 + h
                for i in range(4):
                    o.append(valu("v_fmac_f32", XR(n)[i], GA(h)[i], PR(n, 0)[i]))
                o += [valu("v_cvt_pk_bf16_f32", pk[2 * h], XR(n)[0], XR(n)[1]), valu("v_cvt_pk_bf16_f32", pk[2 * h + 1], XR(n)[2], XR(n)[3]),
                      bstore(pk[2 * h:2 * h + 2], XO, sX, s(52 + b), h * 32)]
        else:
            for h in range(2):
                n = b * 2 + h
                x1, yy = PR(n, 1), PR(n, 2)
                o += [valu("v_lshlrev_b32", x1[0], 16, XR(n)[0]), valu("v_and_b32", x1[1], 0xFFFF0000, XR(n)[0]),
                      valu("v_lshlrev_b32", x1[2], 16, XR(n)[1]), valu("v_and_b32", x1[3], 0xFFFF0000, XR(n)[1])]
                for i in range(4):
                    o.append(valu("v_fmac_f32", x1[i], GA(h)[i], PR(n, 0)[i]))
                o.append(bstore(x1, X1O, sX1, 0 if n < 4 else s(46), (n % 4) * 1024))
                for i in range(4):
                    if h == 0 and i == 0:
                        o += [valu("v_mov_b32", sm, x1[0]), valu("v_mul_f32", sq, x1[0], x1[0])]
                    else:
                        o += [valu("v_add_f32", sm, sm, x1[i]), valu("v_fmac_f32", sq, x1[i], x1[i])]
                    o.append(valu("v_fma_f32", yy[i], GB(h)[i], x1[i], x1[i]))
                o += [valu("v_cvt_pk_bf16_f32", pk[2 * h], yy[0], yy[1]), valu("v_cvt_pk_bf16_f32", pk[2 * h + 1], yy[2], yy[3])]
            o.append(bstore(pk, YO, sY, s(55 + b), 0))
            st2 = RED(3 + b)
            for k, x in enumerate((sm, sq)):
                o += [valu("v_mov_b32", t0, x), valu("v_permlane32_swap_b32", x, t0), valu("v_add_f32", x, x, t0),
                      valu("v_mov_b32", t0, x), valu("v_permlane16_swap_b32", x, t0), valu("v_add_f32", st2[k], x, t0)]
            o += [raw("s_mov_b64 exec, 0xffff", "salu", wr=EXEC.regs()), bstore(st2[0:2], SO, sS, s(58 + b), 0),
                  raw("s_mov_b64 exec, -1", "salu", wr=EXEC.regs())]
    o.append(label(end + "2"))
    if cfg.get("stamp"):
        o += ST(3) + [waitcnt(vm=0)] + ST(4)
    o += [label(end), raw("s_endpgm")]
    text = kernel_text(name, o, [], vgprs=240, agprs=160)
    return f"; @launch kernel={name} grid=({NWG},1,1) block=(256,1,1) lds={LDS}", text


class _M:
    def __init__(self, f): self.build = f


import sys
sys.modules["k_wo"] = _M(lambda cfg=None: build_one("wo_kernel", 3, 4096, WS_O, TS_O, "wo", False, cfg or {}))
sys.modules["k_down"] = _M(lambda cfg=None: build_one("down_kernel", 5, 4608, WS_HH, TS_HH, "w2", True, cfg or {}))
```

```python
import os
ARG = dict(x=0, k=8, v=16, wq=24, wo=32, bx=40, w1=48, w3=56, w2=64, c=72, wmod=80, out=88, dbg=96, ws=104)

PAD = int(os.environ.get("FMPAD", "0"))
TS_H = 18 * 1024
TS_O = 128 * 1024 + PAD
TS_HH = 144 * 1024 + PAD

WS_MODP = 0x0
WS_MOD = 0x10000
WS_UV = 0x20000
WS_STAT = 0x80000
WS_H = 0x100000
WS_O = 0x400000
WS_Y = 0x1600000
WS_X1 = 0x1900000
WS_HH = 0x2000000

SZ_H = 128 * TS_H
SZ_O = 128 * TS_O
SZ_X1 = 240 * 4 * 6 * 1024
SZ_HH = 128 * TS_HH
SZ_STAT = 2048 * 144
```

```python
import sys, importlib
sys.path.insert(0, "gen")
HDR = open("adaLN_cond__gqa_block_cached__glu_gated_swiglu__prompt.s.ref").read().split("; Override launch")[0]
import k_skinny
def build(mods, out, cfgs=None):
    launches, texts = [], []
    for m in mods:
        mod = importlib.import_module(m)
        l, t = mod.build(*( [cfgs[m]] if cfgs and m in cfgs else []))
        launches.append(l); texts.append(t)
    src = HDR + "\n".join(launches) + '\n.amdgcn_target "amdgcn-amd-amdhsa--gfx950"\n' + "".join(texts)
    open(out, "w").write(src)
    return src
if __name__ == "__main__":
    import os, json
    cfg = json.loads(os.environ.get("CFG", "{}"))
    build(sys.argv[2:], sys.argv[1], {m: dict(cfg) for m in sys.argv[2:]})
```
